```python
import torch

def _softmax(x, axis=-1):
    return torch.softmax(x, dim=axis)

def _gelu(x):
    return torch.nn.functional.gelu(x, approximate='tanh')

def _silu(x):
    return torch.nn.functional.silu(x)

def _sigmoid(x):
    return torch.sigmoid(x)

def _layernorm(x, axis=-1, eps=1e-05):
    m = x.mean(dim=axis, keepdim=True)
    v = x.var(dim=axis, keepdim=True, unbiased=False)
    return (x - m) / torch.sqrt(v + eps)

def _scatter_add(tgt, idx, src, axis=0):
    return tgt.clone().index_add_(axis, idx, src)

def _segment_sum(src, seg, n):
    out = torch.zeros((n,) + src.shape[1:], dtype=src.dtype)
    return out.index_add_(0, seg, src)

def _pad(x, pw):
    flat = tuple((v for pair in reversed(pw) for v in pair))
    return torch.nn.functional.pad(x, flat)
kernel_name = 'interleave_layers__linear_attn_block__mixer_gmlp__prompt'

def setup_inputs():

    _w = lambda a: (lambda t: t.to(torch.bfloat16) if t.is_floating_point() else t)(torch.as_tensor(a))

    def _A_setup():
        B, S, D = (1, 2048, 1024)
        return {'x': _w((lambda *s: torch.randn(*s, dtype=torch.bfloat16) * 0.05)(B, S, D)), 'wqkv': _w((lambda *s: torch.randn(*s, dtype=torch.bfloat16) * 0.05)(D, 3 * D)), 'wo': _w((lambda *s: torch.randn(*s, dtype=torch.bfloat16) * 0.05)(D, D))}
    _A_in = _A_setup()

    def _B_setup():
        B, S, D, F = (1, 2048, 1024, 3584)
        Fh = F // 2
        return {'x': _w((lambda *s: torch.randn(*s, dtype=torch.bfloat16) * 0.05)(B, S, D)), 'w_in': _w((lambda *s: torch.randn(*s, dtype=torch.bfloat16) * 0.2)(D, 2 * Fh)), 'w_sp': _w(0.01 * (lambda *s: torch.randn(*s, dtype=torch.bfloat16) * 0.2)(S, S)), 'b_sp': _w(1.0 + 0.01 * (lambda *s: torch.randn(*s, dtype=torch.bfloat16) * 0.05)(S)), 'w_out': _w((lambda *s: torch.randn(*s, dtype=torch.bfloat16) * 0.05)(Fh, D))}
    _B_in = _B_setup()
    return {'A_x': _A_in['x'], 'A_wqkv': _A_in['wqkv'], 'A_wo': _A_in['wo'], 'B_x': _B_in['x'], 'B_w_in': _B_in['w_in'], 'B_w_sp': _B_in['w_sp'], 'B_b_sp': _B_in['b_sp'], 'B_w_out': _B_in['w_out']}

def reference(A_x, A_wqkv, A_wo, B_x, B_w_in, B_w_sp, B_b_sp, B_w_out):

    def _A_ref(x, wqkv, wo):
        B, S, D = x.shape
        H = 32
        Dh = D // H
        qkv = (lambda x, *d: x.permute(*d))((x @ wqkv).reshape(B, S, 3, H, Dh), 2, 0, 3, 1, 4)
        q, k, v = (qkv[0], qkv[1], qkv[2])
        phi = lambda t: torch.where(t > 0, t + 1, torch.exp(t)) + 1e-06
        pq, pk = (phi(q), phi(k))
        kv = torch.einsum('bhsd,bhse->bhde', pk, v)
        z = torch.einsum('bhsd->bhd', pk)
        num = torch.einsum('bhqd,bhde->bhqe', pq, kv)
        den = torch.einsum('bhqd,bhd->bhq', pq, z)[..., None] + 1e-06
        o = num / den
        return (lambda x, *d: x.permute(*d))(o, 0, 2, 1, 3).reshape(B, S, D) @ wo

    def _B_ref(x, w_in, w_sp, b_sp, w_out):
        B, S, D = x.shape
        F = w_in.shape[-1]
        Fh = F // 2
        z = _gelu(torch.einsum('bsd,df->bsf', x, w_in))
        z1 = z[..., :Fh].clone()
        z2 = _layernorm(z[..., Fh:], axis=-1)
        g = torch.einsum('ts,bsf->btf', w_sp, z2) + b_sp[None, :, None]
        return torch.einsum('bsf,fd->bsd', z1 * g, w_out)
    x = A_x
    x = x + _A_ref(_layernorm(x, axis=-1), A_wqkv, A_wo)
    x = x + _B_ref(_layernorm(x, axis=-1), B_w_in, B_w_sp, B_b_sp, B_w_out)
    x = x + _A_ref(_layernorm(x, axis=-1), A_wqkv, A_wo)
    x = x + _B_ref(_layernorm(x, axis=-1), B_w_in, B_w_sp, B_b_sp, B_w_out)
    return x
```

```python
import re

REG_RE = re.compile(r"^-?\|?(?:abs\()?([vas])(?:(\d+)|\[(\d+):(\d+)\])\)?\|?$")

def regs_of(op):
    op = op.strip()
    if op in ("vcc", "vcc_lo", "vcc_hi"): return {("s", 106), ("s", 107)}
    if op == "exec": return {("s", 126), ("s", 127)}
    if op == "m0": return {("s", 124)}
    m = REG_RE.match(op)
    if not m: return set()
    k = m.group(1)
    if m.group(2) is not None: return {(k, int(m.group(2)))}
    return {(k, r) for r in range(int(m.group(3)), int(m.group(4)) + 1)}

TRANS = ("v_exp_f32", "v_log_f32", "v_rcp_f32", "v_rsq_f32", "v_sqrt_f32", "v_sin_f32", "v_cos_f32")

class Ins:
    def __init__(self, text):
        self.text = text
        t = text.split(";")[0].strip()
        self.label = t.endswith(":")
        self.op = t.split()[0] if t else ""
        rest = t[len(self.op):].strip()
        parts = [p.strip() for p in re.split(r",(?![^\[]*\])", rest)] if rest else []
        ops = []; mods = []
        for i, p in enumerate(parts):
            w = p.split()
            if w:
                ops.append(w[0]); mods += w[1:]
        self.ops = ops; self.mods = mods
        op = self.op
        self.mfma = op.startswith("v_mfma")
        self.valu = op.startswith("v_") and not self.mfma
        self.trans = any(op.startswith(x) for x in TRANS)
        self.vmem = op.startswith("buffer_") or op.startswith("global_")
        self.ds = op.startswith("ds_")
        self.salu = op.startswith("s_")
        self.dpp = "dpp" in op or any(m.startswith(("row_", "quad_perm", "wave_")) for m in mods)
        self.perm = op.startswith("v_permlane")
        self.rdlane = op.startswith(("v_readfirstlane", "v_readlane"))
        self.ldsdma = self.vmem and "lds" in mods
        self.sdwa = "sdwa" in op or any(m.startswith("op_sel:") for m in mods) and not op.startswith("v_pk")
        R = [regs_of(o) for o in ops]
        w = set(); r = set()
        self.A = self.B = self.C = set(); self.data = set(); self.wide = False
        if self.label or not op: pass
        elif self.mfma:
            w = R[0]; self.A, self.B, self.C = R[1], R[2], R[3]; r = R[1] | R[2] | R[3]
            self.passes = 8 if "32x32" in op else 4
        elif self.valu:
            if op.startswith("v_cmp"):
                w = R[0]; r = set().union(*R[1:]) if len(R) > 1 else set()
            elif self.perm:
                w = R[0] | R[1]; r = R[0] | R[1]
            elif re.match(r"v_(add|sub|subrev)_co|v_addc|v_subb", op):
                w = R[0] | R[1]; r = set().union(*R[2:])
            else:
                w = R[0]; r = set().union(*R[1:]) if len(R) > 1 else set()
                if op.startswith(("v_fmac", "v_dot2c", "v_pk_fmac")) or self.dpp or "sdwa" in op: r |= R[0]
                if op.startswith("v_cndmask") and len(ops) == 3: r |= regs_of("vcc")
        elif self.ds:
            if op.startswith(("ds_read", "ds_bpermute", "ds_permute", "ds_swizzle")):
                w = R[0]; r = set().union(*R[1:])
            else:
                r = set().union(*R)
        elif self.vmem:
            if op.startswith(("buffer_wbl2", "buffer_inv")): pass
            elif self.ldsdma:
                r = set().union(*R) | regs_of("m0")
            elif "load" in op:
                w = R[0]; r = set().union(*R[1:])
            else:
                r = set().union(*R); self.data = R[0]
                self.wide = "x4" in op or "x3" in op
                if "atomic" in op and "sc0" in mods: w = R[0]
        elif self.salu:
            if op.startswith(("s_cmp", "s_waitcnt", "s_barrier", "s_cbranch", "s_branch", "s_nop", "s_endpgm", "s_sleep", "s_setprio", "s_setpc", "s_bitcmp")):
                r = set().union(*R) if R else set()
            elif op.startswith("s_atomic"):
                r = set().union(*R); w = R[0]
            else:
                w = R[0] if R else set(); r = set().union(*R[1:]) if len(R) > 1 else set()
                if "saveexec" in op: w |= regs_of("exec")
        self.w = w; self.r = r
        self.states = int(ops[0]) + 1 if op == "s_nop" else (0 if self.label else 1)

def isv(x): return x[0] in "va"
def iss(x): return x[0] == "s"

def need(p, c):
    n = 0
    pw_v = {x for x in p.w if isv(x)}; pw_s = {x for x in p.w if iss(x)}
    if p.mfma:
        big = p.passes == 8
        if c.mfma:
            if p.w & (c.A | c.B): n = max(n, 12 if big else 8)
            if p.w & c.C and not (p.w == c.C and c.passes == p.passes): n = max(n, 10 if big else 6)
            if p.w & c.w and not (p.w == c.C): n = max(n, 10 if big else 6)
        elif c.valu or c.vmem or c.ds:
            if p.w & (c.r | c.w): n = max(n, 12 if big else 8)
        if c.valu and (p.C & c.w): n = max(n, 7 if big else 3)
    if p.valu:
        if c.mfma and (pw_v & c.r): n = max(n, 2)
        if p.trans and c.valu and not c.trans and (pw_v & c.r): n = max(n, 1)
        if p.trans and c.valu and c.trans and (pw_v & c.r): n = max(n, 1)
        if (c.perm or c.dpp) and (pw_v & c.r): n = max(n, 2)
        if c.rdlane and (pw_v & c.r): n = max(n, 1)
        if c.valu and (pw_s & c.r): n = max(n, 2)
        if c.vmem and (pw_s & c.r): n = max(n, 5)
        if c.salu and (pw_s & c.r): n = max(n, 1)
        if p.sdwa and c.valu and (pw_v & (c.r | c.w)): n = max(n, 1)
    if p.vmem and p.wide and (p.data & c.w):
        n = max(n, 2 if c.valu else 1)
    if p.ds and p.op.startswith("ds_write") and c.valu and ("b128" in p.op or "b96" in p.op) and (p.r & c.w): n = max(n, 1)
    if p.salu and (("s", 124) in p.w) and (c.ldsdma or c.op.startswith("s_movrel")): n = max(n, 1)
    return n

def pad_hazards(lines):
    out = []; hist = []
    nnop = 0
    for t in lines:
        c = Ins(t)
        if c.label or not c.op:
            out.append(t); continue
        req = 0; dist = 0
        for p in reversed(hist):
            if dist >= 20: break
            k = need(p, c) - dist
            if k > req: req = k
            dist += p.states
        while req > 0:
            k = min(req, 16)
            nop = "s_nop %d" % (k - 1)
            out.append(nop); hist.append(Ins(nop)); req -= k; nnop += 1
        out.append(t); hist.append(c)
        if len(hist) > 40: hist = hist[-24:]
    return out, nnop

class KB:
    def __init__(self, name):
        self.name = name; self.lines = []; self.vmq = []; self.dsq = []; self.uid = 0
    def e(self, s):
        for l in s.split("\n"):
            l = l.strip()
            if l: self.lines.append(l)
    __call__ = e
    def lab(self, base):
        self.uid += 1
        return "%s_%s%d" % (self.name[:2], base, self.uid)
    def vm(self, s, tag=None):
        if len(self.vmq) >= 62:
            self.e("s_waitcnt vmcnt(48)"); self.vmq = self.vmq[-48:]
        self.e(s); self.vmq.append(tag)
    def vmwait(self, *tags):
        idx = -1
        for i, t in enumerate(self.vmq):
            if t in tags: idx = i
        if idx < 0: return
        n = len(self.vmq) - 1 - idx
        self.e("s_waitcnt vmcnt(%d)" % n); self.vmq = self.vmq[idx+1:]
    def vmall(self):
        self.e("s_waitcnt vmcnt(0)"); self.vmq = []
    def ds(self, s, tag=None):
        self.e(s); self.dsq.append(tag)
    def dswait(self, *tags):
        idx = -1
        for i, t in enumerate(self.dsq):
            if t in tags: idx = i
        if idx < 0: return
        n = min(len(self.dsq) - 1 - idx, 15)
        self.e("s_waitcnt lgkmcnt(%d)" % n); self.dsq = self.dsq[len(self.dsq)-n:] if n else []
    def dsall(self):
        self.e("s_waitcnt lgkmcnt(0)"); self.dsq = []
    def safe(self):
        self.e("s_nop 15")
    def text(self):
        out, nnop = pad_hazards(self.lines)
        self.nnop = nnop
        return "".join((l if l.endswith(":") else " " + l) + "\n" for l in out)

def header(name):
    return ".text\n.globl %s\n.p2align 8\n.type %s,@function\n%s:\n" % (name, name, name)

def desc(name, vgpr=256, agpr=0, sgpr=102):
    acc = min(256, (vgpr + 3) // 4 * 4)
    nfv = acc + agpr if agpr else vgpr
    return (".section .rodata,\"a\"\n.p2align 6\n.amdhsa_kernel %s\n"
            "  .amdhsa_next_free_vgpr %d\n  .amdhsa_next_free_sgpr %d\n  .amdhsa_accum_offset %d\n"
            "  .amdhsa_group_segment_fixed_size 0\n  .amdhsa_kernarg_size 88\n  .amdhsa_user_sgpr_count 2\n"
            "  .amdhsa_user_sgpr_kernarg_segment_ptr 1\n  .amdhsa_system_sgpr_workgroup_id_x 1\n"
            "  .amdhsa_float_denorm_mode_32 3\n"
            ".end_amdhsa_kernel\n") % (name, nfv, sgpr, acc)

def srd(k, d, base, nbytes):
    k("s_mov_b32 s%d, s%d\ns_mov_b32 s%d, s%d\ns_mov_b32 s%d, 0x%x\ns_mov_b32 s%d, 0x00020000" %
      (d, base, d+1, base+1, d+2, nbytes, d+3))

def vr(a, n=1, k="v"):
    return "%s%d" % (k, a) if n == 1 else "%s[%d:%d]" % (k, a, a+n-1)

import struct
def f2u(x): return struct.unpack("<I", struct.pack("<f", x))[0]
```

```python
import sys
from kb import *

LS  = 32 << 20
XA  = 0
XB  = 4 << 20
OO  = 8 << 20
Z2  = 12 << 20
HH  = 20 << 20
STA = 28 << 20
STB = STA + 0x40000
ST2 = STA + 0x80000
KVP = 29 << 20
ZP  = 31 << 20
CSP = 96 << 20
FLG = 97 << 20
TSO = 98 << 20
FST = 4352
WSB = 256 << 20
CH  = 0x40000

NSLOT = 9
SLOT = 16384
MISC = NSLOT * SLOT
L_CS  = MISC
L_RT  = MISC + 2048
L_ZS  = MISC + 2560
L_ZF  = MISC + 4608
L_KVF = MISC + 5120
LDSB = 163840

S_WS, S_QKV, S_WO, S_WIN, S_WSP, S_WOUT, S_OUT, S_BSP = 4, 8, 12, 16, 20, 24, 28, 32
sM, sN, sW, sTB, sN2, sLAY = 36, 37, 38, 39, 40, 41
sTB4K, sTILE, sZ2ST, sZ2LD, sKVST, sKVLD, sZPST, sZPLD, sHST, sSTN, sST2N, sOUT = 42, 43, 44, 45, 46, 47, 48, 49, 50, 51, 52, 53
sFROW, sFCW, sFC = 54, 56, 58
sM0, sQA, sQB, sOB = 60, 61, 62, 63
sTOK, sDMA, sT0, sT1, sT2, sT3 = 64, 65, 66, 67, 68, 69
sEPS, sL2E, sONE, sLO = 70, 72, 74, 76
sHI = 78
sTS = 80
vL16, vL4 = 1, 2
vDQ, vDO, vDI, vDS = 3, 7, 11, 15
vAW, vAZ, vAS = 19, 25, 31
vR, vBR, vK1, vK2, vB = 43, 44, 46, 47, 45
vMF = 48
vT = 52
vFQ = 64
vACC = 96
vU = 224
NFQ = 8
LA = 6

C1 = 2.0 * 0.7978845608028654 * 1.4426950408889634
C2 = C1 * 0.044715

def SR(d): return "s[%d:%d]" % (d, d+3)
def SP(d): return "s[%d:%d]" % (d, d+1)

def tile_ids(k):
    k("s_and_b32 s66, s2, 7\ns_lshr_b32 s67, s2, 3")
    k("s_lshr_b32 s%d, s66, 1\ns_lshl_b32 s%d, s%d, 2\ns_lshr_b32 s68, s67, 3\ns_add_u32 s%d, s%d, s68" % (sM, sM, sM, sM, sM))
    k("s_and_b32 s%d, s66, 1\ns_lshl_b32 s%d, s%d, 3\ns_and_b32 s68, s67, 7\ns_add_u32 s%d, s%d, s68" % (sN, sN, sN, sN, sN))
    k("v_lshrrev_b32 v2, 6, v0\nv_readfirstlane_b32 s%d, v2\nv_and_b32 v0, 63, v0" % sW)
    k("s_lshl_b32 s%d, s%d, 2\ns_add_u32 s%d, s%d, s%d" % (sTB, sM, sTB, sTB, sW))

def gen_p0(name, cfg):
    k = KB(name)
    end = name + "_end"
    k("s_cmp_ge_u32 s2, 256\ns_cbranch_scc1 %s" % end)
    k("s_load_dwordx4 s[84:87], s[0:1], 0\ns_load_dwordx2 s[88:89], s[0:1], 16\ns_load_dwordx4 s[92:95], s[0:1], 32\ns_load_dwordx2 s[90:91], s[0:1], 56\ns_load_dwordx2 s[96:97], s[0:1], 80")
    k("v_mov_b32 v40, v0")
    tile_ids(k)
    k("s_waitcnt lgkmcnt(0)")
    srd(k, S_WS, 96, WSB); srd(k, 8, 84, 4 << 20)
    srd(k, S_WO, 88, 2 << 20); srd(k, S_WSP, 94, 8 << 20); srd(k, S_WOUT, 90, 1792*2048)
    k("v_and_b32 v3, 31, v0\nv_lshlrev_b32 v3, 11, v3\nv_lshrrev_b32 v4, 5, v0\nv_lshl_add_u32 v3, v4, 4, v3")
    k("s_lshl_b32 s66, s%d, 16\ns_lshl_b32 s67, s%d, 7\ns_add_u32 s66, s66, s67" % (sTB, sN))
    for kb_ in range(4):
        k.vm("buffer_load_dwordx4 %s, v3, s[8:11], s66 offen offset:%d" % (vr(8+4*kb_, 4), kb_*32), "x")
    k("s_lshr_b32 s68, s2, 1\ns_and_b32 s69, s2, 1")
    k("s_cmp_lt_u32 s68, 48")
    k("s_cselect_b32 s16, s86, s92\ns_cselect_b32 s17, s87, s93\ns_cselect_b32 s18, 0x%x, 0x%x\ns_mov_b32 s19, 0x00020000".replace("0x%x, 0x%x", "s70, s71") if False else
      "s_cselect_b32 s16, s86, s92\ns_cselect_b32 s17, s87, s93\ns_mov_b32 s19, 0x00020000")
    k("s_mov_b32 s70, %d\ns_mov_b32 s71, %d\ns_cselect_b32 s18, s70, s71" % (1024*6144, 1024*7168))
    k("s_mov_b32 s70, 6144\ns_mov_b32 s71, 7168\ns_cselect_b32 s70, s70, s71")
    k("s_cselect_b32 s71, 0, 48\ns_sub_u32 s71, s68, s71\ns_lshl_b32 s71, s71, 7")
    k("s_cmp_lt_u32 s2, 208\ns_cselect_b32 s18, s18, 0")
    k("v_lshrrev_b32 v5, 3, v40\ns_lshl_b32 s72, s69, 9\nv_add_u32 v5, s72, v5\nv_mul_lo_u32 v5, v5, s70\nv_and_b32 v6, 7, v40\nv_lshl_add_u32 v5, v6, 4, v5")
    k("s_lshl_b32 s72, s70, 5")
    for s in range(16):
        k.vm("buffer_load_dwordx4 %s, v5, s[16:19], s71 offen" % vr(64+4*s, 4), "cs")
        k("s_add_u32 s71, s71, s72")
    if cfg.get("warm", True):
        k("s_lshl_b32 s72, s2, 8\nv_add_u32 v7, s72, v40\nv_lshlrev_b32 v7, 7, v7")
        k.vm("buffer_load_dword v41, v7, %s, 0 offen" % SR(S_WSP), "w")
        k.vm("buffer_load_dword v42, v7, %s, 0 offen" % SR(S_WOUT), "w")
        k.vm("buffer_load_dword v43, v7, %s, 0 offen" % SR(S_WO), "w")
    k("s_mul_i32 s72, s2, 12\nv_add_u32 v44, s72, v40\nv_lshrrev_b32 v45, 4, v44\nv_mul_u32_u24 v45, %d, v45\nv_and_b32 v44, 15, v44\nv_lshl_add_u32 v44, v44, 8, v45" % FST)
    k("v_cmp_gt_u32 vcc, 12, v40\nv_mov_b32 v45, 0x7ffff000\nv_cndmask_b32 v44, v45, v44, vcc\nv_mov_b32 v45, 0\ns_mov_b32 s72, 0x%x" % FLG)
    k.vm("buffer_store_dword v45, v44, %s, s72 offen" % SR(S_WS))
    k.vmwait("x")
    k("v_lshlrev_b32 v1, 4, v0\nv_lshlrev_b32 v2, 2, v0")
    k("s_lshl_b32 s66, s%d, 12\ns_lshl_b32 s67, s%d, 18\ns_add_u32 s67, s67, s66" % (sTB, sN))
    for kb_ in range(4):
        k.vm("buffer_store_dwordx4 %s, v1, %s, s67 offen offset:%d" % (vr(8+4*kb_, 4), SR(S_WS), kb_*1024))
    k("s_mov_b32 s73, 0xffff0000\nv_mov_b32 v30, 0\nv_mov_b32 v31, 0")
    for j in range(16):
        k("v_lshlrev_b32 v32, 16, v%d\nv_and_b32 v33, s73, v%d" % (8+j, 8+j))
        k("v_add_f32 v30, v30, v32\nv_fmac_f32 v31, v32, v32\nv_add_f32 v30, v30, v33\nv_fmac_f32 v31, v33, v33")
    k("v_permlane32_swap_b32 v30, v31\nv_add_f32 v30, v30, v31")
    k("s_lshl_b32 s67, s%d, 8\ns_add_u32 s67, s67, s66\ns_add_u32 s67, s67, 0x%x" % (sN, STA))
    k.vm("buffer_store_dword v30, v2, %s, s67 offen" % SR(S_WS))
    k.vmwait("cs")
    for c in range(8): k("v_mov_b32 v%d, 0" % (48+c))
    for s in range(16):
        for d in range(4):
            r = 64 + 4*s + d
            k("v_lshlrev_b32 v32, 16, v%d\nv_and_b32 v33, s73, v%d\nv_add_f32 v%d, v%d, v32\nv_add_f32 v%d, v%d, v33" % (r, r, 48+2*d, 48+2*d, 49+2*d, 49+2*d))
    k("v_lshlrev_b32 v34, 5, v40")
    k.ds("ds_write_b128 v34, v[48:51]"); k.ds("ds_write_b128 v34, v[52:55] offset:16")
    k.dsall(); k("s_barrier")
    k("s_cmp_lg_u32 s%d, 0\ns_cbranch_scc1 %s" % (sW, end))
    for r in range(32):
        k.ds("ds_read_b32 v%d, v2 offset:%d" % (64+r, r*256))
        if r % 8 == 7: k.dsall()
    for r in range(1, 32): k("v_add_f32 v64, v64, v%d" % (64+r))
    k("s_mul_i32 s72, s69, %d\ns_lshl_b32 s71, s68, 8\ns_add_u32 s72, s72, s71\ns_add_u32 s72, s72, 0x%x" % (6656*4, CSP))
    k("s_cmp_lt_u32 s2, 208\ns_cbranch_scc0 %s" % end)
    k.vm("buffer_store_dword v64, v2, %s, s72 offen" % SR(S_WS))
    k("%s:\ns_waitcnt vmcnt(0)\ns_endpgm" % end)
    return header(name) + k.text() + desc(name, vgpr=128)

class Sched:
    def __init__(self, k):
        self.k = k; self.q = []; self.cur = None
        self.released = set(range(-NSLOT, 0)); self.readdone = set(); self.ready = set()
        self.gates = set()
    def add(self, dl, tag, emit, slot=None, first=False, last=False, gate=None):
        self.q.append(dict(dl=dl, tag=tag, emit=emit, slot=slot, first=first, last=last, gate=gate, n=len(self.q)))
        self.q.sort(key=lambda o: o["dl"])
    def elig(self, o):
        if o["gate"] is not None and o["gate"] not in self.gates: return False
        if o["slot"] is not None:
            if self.cur is not None: return o["slot"] == self.cur
            return o["first"] and (o["slot"] - NSLOT) in self.released
        return True
    def issue(self, o):
        self.q.remove(o); o["emit"]()
        if o["slot"] is not None: self.cur = None if o["last"] else o["slot"]
    def pump(self, n=1, maxdl=None):
        c = 0
        while c < n:
            o = next((o for o in self.q if self.elig(o) and (maxdl is None or o["dl"] <= maxdl)), None)
            if o is None: break
            self.issue(o); c += 1
        return c
    def force(self, tag):
        while any(o["tag"] == tag for o in self.q):
            o = next((o for o in self.q if self.elig(o)), None)
            assert o is not None, ("stuck", tag, self.q[:3], self.cur)
            self.issue(o)
    def need(self, tag):
        self.force(tag); self.k.vmwait(tag)
    def barrier(self):
        self.k("s_barrier"); self.released |= self.readdone; self.readdone = set()
    def slot_ready(self, q):
        if q in self.ready: return
        self.need(("slot", q)); self.barrier(); self.ready.add(q)

def phys(q): return (q % NSLOT) * SLOT

class Main:
    def __init__(self, name, cfg):
        self.name = name; self.cfg = cfg
        self.k = KB(name); self.s = Sched(self.k)
        self.fq = 0; self.nts = 0; self.issued = set()

    def ts(self):
        if not self.cfg.get("ts"): return
        k = self.k
        k.dsall()
        k("s_memtime s[80:81]\ns_waitcnt lgkmcnt(0)\nv_mov_b32 v%d, s80" % (vT+11))
        k.vm("buffer_store_dword v%d, v%d, %s, s82 offen offset:%d" % (vT+11, vL4+0, SR(S_WS), 0), None) if False else None
        k("s_mov_b64 exec, 1")
        k.vm("buffer_store_dword v%d, off, %s, s82" % (vT+11, SR(S_WS)))
        k("s_mov_b64 exec, -1\ns_add_u32 s82, s82, 4")
        self.nts += 1

    def dma_slot(self, q, dl, srdr, vbase, soff_base, soff_lit, gate=None, flags=""):
        k = self.k
        for d in range(4):
            def emit(d=d):
                if d == 0:
                    k("s_add_u32 m0, s%d, 0x%x" % (sM0, phys(q)))
                    if soff_base is None: k("s_mov_b32 s%d, 0x%x" % (sDMA, soff_lit))
                    else: k("s_add_u32 s%d, s%d, 0x%x" % (sDMA, soff_base, soff_lit))
                v = vbase + d if vbase != vL16 else vL16
                k.vm("buffer_load_dwordx4 v%d, %s, s%d offen offset:%d %s lds" % (v, SR(srdr), sDMA, d*1024, flags), ("slot", q))
            self.s.add(dl + d*0.01, ("slot", q), emit, slot=q, first=(d == 0), last=(d == 3), gate=gate)

    def tok_loads(self, region, nfrag, dl_of, tagp, gate_of):
        k = self.k
        for f in range(nfrag):
            def emit(f=f):
                if f % 4 == 0: k("s_add_u32 s%d, s%d, 0x%x" % (sTOK, sTB4K, region + (f//4)*CH))
                k.vm("buffer_load_dwordx4 %s, v%d, %s, s%d offen offset:%d sc1" % (vr(4*(f % 64), 4, "a"), vL16, SR(S_WS), sTOK, (f % 4)*1024), (tagp, f))
            self.s.add(dl_of(f), (tagp, f), emit, gate=gate_of(f))

    def signal(self, base, idx):
        self.k("s_mov_b32 s%d, 1\ns_atomic_add s%d, %s, 0x%x" % (sT2, sT2, SP(base), idx*256))

    def wait(self, base, idx, target):
        k = self.k
        L = k.lab("w"); D = k.lab("d")
        k("s_mov_b32 s%d, 0" % sT1)
        k("%s:\ns_mov_b32 s%d, 0\ns_atomic_add s%d, %s, 0x%x glc\ns_add_u32 s%d, s%d, 1" % (L, sT0, sT0, SP(base), idx*256, sT1, sT1))
        k.dsall()
        k("s_cmp_ge_u32 s%d, %d\ns_cbranch_scc1 %s\ns_cmp_lt_u32 s%d, 0x8000\ns_cbranch_scc1 %s\n%s:" % (sT0, target, D, sT1, L, D))

    def frag_read(self, it):
        k = self.k
        q = it["q"]
        self.s.slot_ready(q)
        r = vFQ + 4*(self.fq % NFQ); self.fq += 1
        it["fr"] = r
        for rd in range(2):
            if it["pat"] == "w":
                a = phys(q) + it["off"] + rd*512; v = vAW + 2*(a >> 16) + it["b"]
            else:
                a = phys(q) + it["off"]; v = vAZ + 2*(a >> 16) + rd
            k.ds("ds_read_b64_tr_b16 %s, v%d offset:%d" % (vr(r + 2*rd, 2), v, a & 0xffff), ("fr", id(it)))

    def stream(self, items, vm_every=2, events=None, rate=2, horizon=None):
        k = self.k; s = self.s
        events = events or {}
        fill = []
        last_of = {}
        for i, it in enumerate(items): last_of[it["q"]] = i
        for i in range(min(LA, len(items))): self.frag_read(items[i])
        for i, it in enumerate(items):
            fill += events.get(i, [])
            if it.get("tok") is not None: s.need(it["tok"])
            if it.get("tokds") is not None:
                assert it["tokds"] in self.issued, it
                k.dswait(it["tokds"])
            k.dswait(("fr", id(it)))
            acc = vr(it["acc"], 16); c = "0" if it.get("zero") else acc
            w = vr(it["fr"], 4); t = vr(it["t"], 4, "a")
            a, b = (w, t) if it["ori"] == "F" else (t, w)
            k("v_mfma_f32_32x32x16_bf16 %s, %s, %s, %s" % (acc, a, b, c))
            if it.get("gate") is not None: s.gates.add(it["gate"])
            if last_of[it["q"]] == i: s.readdone.add(it["q"])
            if i + LA < len(items): self.frag_read(items[i + LA])
            if i % vm_every == vm_every - 1: s.pump(1)
            n = 0
            while fill and n < rate:
                f = fill.pop(0)
                if callable(f): n += (f() or 0)
                else: k(f); n += 2 if f.startswith(TRANS) else 1
        for f in fill:
            if callable(f): f()
            else: k(f)

    def straight(self, code, every=16):
        n = 0
        for f in code:
            if callable(f): f()
            else:
                self.k(f); n += 1
                if n % every == 0: self.s.pump(1)

    def stats_loads(self, region, n, dst, dl, tag, gate=None):
        k = self.k
        for i in range(n):
            def emit(i=i):
                if i == 0: k("s_add_u32 s%d, s%d, 0x%x" % (sT3, sTB4K, region))
                k.vm("buffer_load_dword v%d, v%d, %s, s%d offen offset:%d sc1" % (dst+i, vL4, SR(S_WS), sT3, i*256), tag)
            self.s.add(dl + i*0.01, tag, emit, gate=gate)

    def sum_regs(self, src, n):
        code = []; regs = list(range(src, src+n))
        while len(regs) > 1:
            nxt = []
            for i in range(0, len(regs) - 1, 2):
                code.append("v_add_f32 v%d, v%d, v%d" % (regs[i], regs[i], regs[i+1])); nxt.append(regs[i])
            if len(regs) % 2: nxt.append(regs[-1])
            regs = nxt
        return code

    def ln_stats(self, src):
        X, Y = src, src+1
        c = self.sum_regs(src, 16)
        c += ["v_mov_b32 v%d, v%d" % (Y, X), "v_permlane32_swap_b32 v%d, v%d" % (X, Y),
              "v_mul_f32 v%d, 0x%x, v%d" % (X, f2u(-1.0/1024), X), "v_mul_f32 v%d, 0x%x, v%d" % (Y, f2u(1.0/1024), Y),
              "v_fma_f32 v%d, -v%d, v%d, v%d" % (Y, X, X, Y), "v_max_f32 v%d, 0, v%d" % (Y, Y),
              "v_add_f32 v%d, 0x%x, v%d" % (Y, f2u(1e-5), Y), "v_rsq_f32 v%d, v%d" % (vR, Y),
              "v_cndmask_b32 v%d, 0, v%d, %s" % (X, X, SP(sLO)),
              "v_cvt_pk_bf16_f32 v%d, v%d, v%d" % (vMF, X, X), "v_and_b32 v%d, s%d, v%d" % (Y, sHI, vMF),
              "v_sub_f32 v%d, v%d, v%d" % (Y, X, Y), "v_cvt_pk_bf16_f32 v%d, v%d, v%d" % (vMF+1, Y, Y)]
        return c

    def correct(self, blocks, ori):
        k = self.k
        k("v_and_b32 v%d, 0x7c, v%d\nv_add_u32 v%d, 0x%x, v%d" % (vT, vL4, vT, L_CS, vT))
        rs = []
        for (b, acc) in blocks:
            r = vFQ + 4*(self.fq % NFQ); self.fq += 1; rs.append(r)
            k.ds("ds_read_b32 v%d, v%d offset:%d" % (r, vT, b*128), "cs")
            k.ds("ds_read_b32 v%d, v%d offset:%d" % (r+1, vT, b*128), "cs")
        k.dswait("cs")
        for (b, acc), r in zip(blocks, rs):
            a, bb = (vr(r, 4), vr(vMF, 4)) if ori == "F" else (vr(vMF, 4), vr(r, 4))
            k("v_mfma_f32_32x32x16_bf16 %s, %s, %s, %s" % (vr(acc, 16), a, bb, vr(acc, 16)))

    def resid_init(self, region, dl):
        k = self.k
        for i in range(4):
            def emit(i=i):
                if i == 0: k("s_add_u32 s%d, s%d, 0x%x" % (sT3, sTILE, region))
                k.vm("buffer_load_dwordx4 %s, v%d, %s, s%d offen offset:%d sc1" % (vr(vU+4*i, 4), vL16, SR(S_WS), sT3, i*1024), "res")
            self.s.add(dl + i*0.01, "res", emit)
    def resid_unpack(self, acc):
        c = [lambda: self.s.need("res")]
        for j in range(16):
            c += ["v_lshlrev_b32 v%d, 16, v%d" % (acc+2*j, vU+j), "v_and_b32 v%d, s%d, v%d" % (acc+2*j+1, sHI, vU+j)]
        return c

    def x_epilogue(self, acc, region, stregion, final_ok):
        k = self.k
        S, Q = vT, vT+2
        k("v_pk_mul_f32 %s, %s, %s" % (vr(Q, 2), vr(acc, 2), vr(acc, 2)))
        k("v_pk_add_f32 %s, %s, %s" % (vr(S, 2), vr(acc, 2), vr(acc+2, 2)))
        for j in range(16): k("v_cvt_pk_bf16_f32 v%d, v%d, v%d" % (vU+j, acc+2*j, acc+2*j+1))
        if final_ok:
            F = k.lab("fin")
            k("s_cmp_eq_u32 s%d, 1\ns_cbranch_scc1 %s" % (sLAY, F))
            self.final_label = F
        k("s_add_u32 s%d, s%d, 0x%x" % (sT3, sTILE, region))
        for i in range(4):
            k.vm("buffer_store_dwordx4 %s, v%d, %s, s%d offen offset:%d sc1" % (vr(vU+4*i, 4), vL16, SR(S_WS), sT3, i*1024), "st")
        for j in range(1, 16):
            k("v_pk_fma_f32 %s, %s, %s, %s" % (vr(Q, 2), vr(acc+2*j, 2), vr(acc+2*j, 2), vr(Q, 2)))
            if j > 1: k("v_pk_add_f32 %s, %s, %s" % (vr(S, 2), vr(S, 2), vr(acc+2*j, 2)))
        k("v_add_f32 v%d, v%d, v%d\nv_add_f32 v%d, v%d, v%d" % (S, S, S+1, Q, Q, Q+1))
        k("v_permlane32_swap_b32 v%d, v%d\nv_add_f32 v%d, v%d, v%d" % (S, Q, S, S, Q))
        k("s_add_u32 s%d, s%d, 0x%x" % (sT3, sSTN, stregion))
        k.vm("buffer_store_dword v%d, v%d, %s, s%d offen sc1" % (S, vL4, SR(S_WS), sT3), "st")

    def stop(self, what):
        if self.cfg.get("stop") == what:
            self.k("s_cmp_eq_u32 s%d, %d\ns_cbranch_scc1 %s_exit" % (sLAY, self.cfg.get("stop_layer", 0), self.name))

    def prologue(self):
        k = self.k
        k("s_cmp_ge_u32 s2, 256\ns_cbranch_scc1 %s_end" % self.name)
        k("s_load_dwordx4 s[84:87], s[0:1], 8\ns_load_dwordx8 s[88:95], s[0:1], 32\ns_load_dwordx2 s[96:97], s[0:1], 64\ns_load_dwordx2 s[98:99], s[0:1], 80")
        tile_ids(k)
        k("s_lshr_b32 s66, s%d, 3\ns_sub_u32 s%d, s%d, s66\ns_min_u32 s%d, s%d, 13" % (sN, sN2, sN, sN2, sN2))
        k("s_mov_b32 s%d, 0" % sLAY)
        k("s_lshl_b32 s%d, s%d, 12" % (sTB4K, sTB))
        k("s_lshl_b32 s66, s%d, 18\ns_add_u32 s%d, s%d, s66" % (sN, sTILE, sTB4K))
        k("s_lshl_b32 s66, s%d, 19\ns_lshl_b32 s67, s%d, 13\ns_add_u32 s%d, s66, s67" % (sN2, sTB, sZ2ST))
        k("s_lshl_b32 s%d, s%d, 12\ns_add_u32 s%d, s66, s%d" % (sM0, sW, sZ2LD, sM0))
        k("s_add_u32 s%d, s%d, s66" % (sHST, sTB4K))
        k("s_lshl_b32 s66, s%d, 2\ns_add_u32 s66, s66, s%d" % (sN, sW))
        k("s_lshl_b32 s%d, s66, 15\ns_lshl_b32 s67, s%d, 11\ns_add_u32 s%d, s%d, s67" % (sKVLD, sM, sKVST, sKVLD))
        k("s_lshl_b32 s%d, s66, 12\ns_lshl_b32 s67, s%d, 8\ns_add_u32 s%d, s%d, s67" % (sZPLD, sM, sZPST, sZPLD))
        k("s_mul_i32 s83, s66, %d" % FST)
        k("s_lshl_b32 s67, s%d, 8\ns_add_u32 s%d, s%d, s67" % (sN, sSTN, sTB4K))
        k("s_lshl_b32 s67, s%d, 8\ns_add_u32 s%d, s%d, s67" % (sN2, sST2N, sTB4K))
        k("s_lshl_b32 s66, s%d, 16\ns_lshl_b32 s67, s%d, 7\ns_add_u32 s%d, s66, s67" % (sTB, sN, sOUT))
        k("s_lshr_b32 s66, s%d, 1\ns_add_u32 s67, s66, 1\ns_lshl_b32 s%d, s67, 11" % (sW, sQA))
        k("s_mul_i32 s%d, s66, %d\ns_lshl_b32 s%d, s66, 17" % (sQB, 64*6144, sOB))
        for p, val in ((sEPS, f2u(1e-6)), (sL2E, f2u(1.4426950408889634)), (sONE, f2u(1.0))):
            k("s_mov_b32 s%d, 0x%x\ns_mov_b32 s%d, 0x%x" % (p, val, p+1, val))
        k("s_mov_b32 s%d, -1\ns_mov_b32 s%d, 0\ns_mov_b32 s%d, 0xffff0000" % (sLO, sLO+1, sHI))
        k("v_lshlrev_b32 v%d, 4, v0\nv_lshlrev_b32 v%d, 2, v0" % (vL16, vL4))
        rho, qq, t0, t1 = vT, vT+1, vT+2, vT+3
        k("v_lshrrev_b32 v%d, 3, v0\nv_and_b32 v%d, 7, v0" % (rho, qq))
        k("v_lshrrev_b32 v%d, 4, v0\nv_and_b32 v%d, 1, v%d\nv_lshlrev_b32 v%d, 2, v%d\nv_xor_b32 v%d, v%d, v%d\nv_lshlrev_b32 v%d, 4, v%d" % (t0, t0, t0, t0, t0, t0, t0, qq, t0, t0))
        k("s_and_b32 s66, s%d, 1\ns_lshl_b32 s66, s66, 5\nv_add_u32 v%d, s66, v%d" % (sW, t1, rho))
        k("s_lshr_b32 s68, s%d, 1\ns_lshl_b32 s68, s68, 7\ns_lshl_b32 s69, s%d, 8\ns_add_u32 s68, s68, s69" % (sW, sN2))
        k("s_lshl_b32 s67, s%d, 7" % sN)
        for vb, ld, col in ((vDQ, 6144, 67), (vDO, 2048, 67), (vDI, 7168, 68)):
            k("v_mul_u32_u24 v%d, %d, v%d\nv_add3_u32 v%d, v%d, v%d, s%d" % (vb, ld, t1, vb, vb, t0, col))
            for d in range(1, 4): k("v_add_u32 v%d, 0x%x, v%d" % (vb+d, d*(8*ld - 1024), vb))
        k("s_lshl_b32 s66, s%d, 17" % sTB)
        for d in range(4):
            k("v_lshrrev_b32 v%d, 1, v%d\nv_add_u32 v%d, %d, v%d\nv_and_b32 v%d, 7, v%d\nv_xor_b32 v%d, v%d, v%d" % (t0, rho, t0, 4*d, t0, t0, t0, t0, t0, qq))
            k("v_lshlrev_b32 v%d, 12, v%d\nv_lshl_add_u32 v%d, v%d, 4, v%d\nv_add_u32 v%d, 0x%x, v%d\nv_add_u32 v%d, s66, v%d" % (t1, rho, t1, t0, t1, t1, d*(8*4096 - 1024), t1, vDS+d, t1))
        G, r_, cs = vT+4, vT+5, vT+6
        k("v_lshrrev_b32 v%d, 4, v0\nv_bfe_u32 v%d, v0, 2, 2" % (G, r_))
        k("v_and_b32 v%d, 1, v0\nv_lshlrev_b32 v%d, 1, v%d\nv_bfe_u32 v%d, v0, 1, 1\nv_or_b32 v%d, v%d, v%d" % (cs, cs, cs, t0, cs, cs, t0))
        k("v_lshrrev_b32 v%d, 1, v%d\nv_lshl_add_u32 v%d, v%d, 3, v%d\nv_lshlrev_b32 v%d, 7, v%d" % (t0, G, t0, t0, r_, t0, t0))
        k("v_lshrrev_b32 v%d, 1, v%d\nv_lshl_add_u32 v%d, v%d, 6, v%d" % (t1, r_, t0, t1, t0))
        k("v_and_b32 v%d, 1, v%d\nv_lshl_add_u32 v%d, v%d, 5, v%d\nv_lshl_add_u32 v%d, v%d, 3, v%d" % (t1, G, t0, t1, t0, vAW, cs, t0))
        k("v_xor_b32 v%d, 64, v%d" % (vAW+1, vAW))
        k("v_lshrrev_b32 v%d, 1, v%d\nv_xor_b32 v%d, v%d, v%d\nv_and_b32 v%d, 1, v%d\nv_lshlrev_b32 v%d, 7, v%d" % (t0, G, t0, t0, G, t0, t0, t0, t0))
        k("v_lshl_add_u32 v%d, v%d, 4, v%d\nv_lshl_add_u32 v%d, v%d, 10, v%d" % (t0, r_, t0, t0, t1, t0))
        k("v_lshrrev_b32 v%d, 1, v%d\nv_mul_u32_u24 v%d, %d, v%d\nv_add_u32 v%d, v%d, v%d" % (t1, cs, t1, 512+64, t1, t0, t0, t1))
        k("v_and_b32 v%d, 1, v%d\nv_lshl_add_u32 v%d, v%d, 3, v%d\nv_xor_b32 v%d, 64, v%d" % (t1, cs, vAZ, t1, t0, vAZ+1, vAZ))
        k("v_and_b32 v%d, 31, v0\nv_bfe_u32 v%d, v0, 1, 3\nv_lshrrev_b32 v%d, 5, v0\nv_xor_b32 v%d, v%d, v%d" % (t0, t1, G, t1, t1, G))
        k("v_lshlrev_b32 v%d, 7, v%d\nv_lshl_add_u32 v%d, v%d, 4, v%d\nv_add_u32 v%d, s%d, v%d" % (t0, t0, t0, t1, t0, vAS, sM0, t0))
        for u in range(1, 4): k("v_xor_b32 v%d, %d, v%d" % (vAS+u, 32*u, vAS))
        for win in (1, 2):
            for i in range(2):
                k("v_add_u32 v%d, 0x%x, v%d\nv_add_u32 v%d, 0x%x, v%d" % (vAW+2*win+i, win << 16, vAW+i, vAZ+2*win+i, win << 16, vAZ+i))
            for u in range(4): k("v_add_u32 v%d, 0x%x, v%d" % (vAS+4*win+u, win << 16, vAS+u))
        k("v_mov_b32 v%d, 0\nv_mov_b32 v%d, 0" % (vMF+2, vMF+3))
        k("s_waitcnt lgkmcnt(0)")
        srd(k, S_WS, 98, WSB); srd(k, S_QKV, 84, 1024*6144); srd(k, S_WO, 86, 1024*2048); srd(k, S_WIN, 88, 1024*7168)
        srd(k, S_WSP, 90, 2048*4096); srd(k, S_BSP, 92, 4096); srd(k, S_WOUT, 94, 1792*2048); srd(k, S_OUT, 96, 2048*2048)
        k("s_add_u32 s66, s98, 0x%x\ns_addc_u32 s67, s99, 0" % FLG)
        k("s_mul_i32 s68, s%d, %d\ns_add_u32 s%d, s66, s68\ns_addc_u32 s%d, s67, 0" % (sTB, FST, sFROW, sFROW+1))
        k("s_add_u32 s68, s83, %d\ns_add_u32 s%d, s66, s68\ns_addc_u32 s%d, s67, 0" % (64*FST, sFCW, sFCW+1))
        k("s_mul_i32 s68, s%d, %d\ns_add_u32 s68, s68, %d\ns_add_u32 s%d, s66, s68\ns_addc_u32 s%d, s67, 0" % (sN2, FST, 128*FST, sFC, sFC+1))
        if self.cfg.get("ts"):
            k("s_lshl_b32 s82, s2, 2\ns_add_u32 s82, s82, s%d\ns_lshl_b32 s82, s82, 8\ns_add_u32 s82, s82, 0x%x" % (sW, TSO))
            self.ts()

    def prologue2(self):
        k = self.k
        t0, t1 = vT, vT+1
        k("v_and_b32 v%d, 0x33, v0\nv_bfe_u32 v%d, v0, 2, 1\nv_lshl_or_b32 v%d, v%d, 3, v%d" % (t0, t1, t0, t1, t0))
        k("v_bfe_u32 v%d, v0, 3, 1\nv_lshl_or_b32 v%d, v%d, 2, v%d\nv_lshlrev_b32 v%d, 2, v%d" % (t1, t0, t1, t0, t0, t0))
        k("s_lshl_b32 s66, s%d, 8\ns_lshl_b32 s67, s%d, 9" % (sN, sN2))
        bases = [(66, 1024), (66, 2048), (66, 0), (67, 4864), (67, 4928), (67, 3072), (67, 3136)]
        for p, (sr, col) in enumerate(bases):
            for h in range(2):
                k("s_add_u32 s68, s%d, 0x%x" % (sr, CSP + col*4 + h*6656*4))
                k.vm("buffer_load_dword v%d, v%d, %s, s68 offen" % (vU+2*p+h, t0, SR(S_WS)), "cs0")
        k("v_and_b32 v%d, 31, v0\nv_lshlrev_b32 v%d, 1, v%d\ns_lshl_b32 s68, s%d, 6" % (t1, t1, t1, sTB))
        k.vm("buffer_load_ushort v%d, v%d, %s, s68 offen" % (vB, t1, SR(S_BSP)), "cs0")
        k.vmwait("cs0")
        k("v_lshlrev_b32 v%d, 16, v%d\nv_add_u32 v%d, 0x%x, v%d" % (vB, vB, t0, L_CS, vL4))
        for p in range(7):
            a, b = vU+2*p, vU+2*p+1
            k("v_add_f32 v%d, v%d, v%d\nv_cvt_pk_bf16_f32 v%d, v%d, v%d\nv_lshlrev_b32 v%d, 16, v%d\nv_sub_f32 v%d, v%d, v%d\nv_cvt_pk_bf16_f32 v%d, v%d, v%d" % (a, a, b, b, a, a, b, b, b, a, b, a, a, b))
            k.ds("ds_write_b32 v%d, v%d offset:%d" % (t0, a, p*256))
        k.dsall()

    QA1 = 0; QB1 = [16, 17, 18, 19, 20, 21, 22, 25]; QS = (23, 24); Q3 = 26; QA4 = 34; QB4 = 50; Q5 = 66; Q6 = 130; QN = 144
    G1A = 0; G1B = 256; G3 = 384; G4A = 512; G4B = 768; G5 = 1024; G6 = 1536; GN = 1760

    def add_g1a_slots(self, base_q, base_g):
        for j in range(16):
            self.dma_slot(base_q + j, base_g + 16*j - LA, S_QKV, vDQ, sQA, j*64*6144)

    def queue_weights(self):
        for j in range(8): self.dma_slot(self.QB1[j], self.G1B + 16*j - LA, S_QKV, vDQ, sQB, j*128*6144)
        for j in range(8): self.dma_slot(self.Q3 + j, self.G3 + 16*j - LA, S_WO, vDO, sOB, j*128*2048)
        for j in range(16): self.dma_slot(self.QA4 + j, self.G4A + 16*j - LA, S_WIN, vDI, None, j*64*7168 + 3584)
        for j in range(16): self.dma_slot(self.QB4 + j, self.G4B + 16*j - LA, S_WIN, vDI, None, j*64*7168)
        for j in range(32):
            self.dma_slot(self.Q5 + 2*j, self.G5 + 16*j - 16 - LA, S_WSP, vDS, None, j*128)
            self.dma_slot(self.Q5 + 2*j + 1, self.G5 + 16*j - LA, S_WS, vL16, sZ2LD, Z2 + j*16384, gate="S5", flags="sc1")
        for j in range(14): self.dma_slot(self.Q6 + j, self.G6 + 16*j - LA, S_WOUT, vDO, sOB, j*128*2048)

    def items4(self, q0, acc, ori, tagp=None):
        its = []
        for j in range(16):
            for u in range(4):
                for b in range(4):
                    f = 4*j + u
                    its.append(dict(q=q0+j, pat="w", off=(b//2)*8192 + u*2048, b=b % 2, acc=acc+16*b, t=4*f, ori=ori,
                                    zero=(f == 0), tok=(tagp, f) if (tagp and b == 0) else None))
        return its
    def items2(self, qs, acc, tagp=None, zero=True, gatep=None):
        its = []
        for j, q in enumerate(qs):
            for u in range(8):
                for b in range(2):
                    f = 8*j + u
                    its.append(dict(q=q, pat="w", off=u*2048, b=b, acc=acc+16*b, t=4*(f % 64), ori="F",
                                    zero=(zero and f == 0), tok=(tagp, f) if (tagp and b == 0) else None,
                                    gate=(gatep, f) if (gatep and b == 1) else None))
        return its

    def g1(self):
        k = self.k; s = self.s
        A = vACC; B = vACC + 64; RT = vACC + 96; PK = vACC + 112
        self.tok_loads(XA, 64, lambda f: self.G1A + 4*f - 40, "t1", lambda f: None)
        self.stats_loads(STA, 16, vU, self.G1A + 200, "sa")
        s.pump(8)
        ev = {232: [lambda: s.need("sa")] + self.ln_stats(vU)}
        self.stream(self.items4(self.QA1, A, "T", "t1"), vm_every=2, events=ev, rate=2)
        s.barrier()
        self.ts()
        k("v_and_b32 v%d, 0x7c, v%d\ns_lshl_b32 s66, s%d, 7\ns_add_u32 s66, s66, 0x%x\nv_add_u32 v%d, s66, v%d" % (vT+1, vL4, sW, L_RT, vT+1, vT+1))
        k.ds("ds_write_b32 v%d, v%d" % (vT+1, vR))
        k("v_lshrrev_b32 v%d, 5, v0\nv_lshl_add_u32 v%d, v%d, 4, s66" % (vT+2, vT+2, vT+2))
        k.dsall()
        for a in range(4): k.ds("ds_read_b128 %s, v%d offset:%d" % (vr(RT+4*a, 4), vT+2, a*32), "rt")
        self.correct([(b, A+16*b) for b in range(4)], "T")
        k.dswait("rt")
        ZS = vT + 4
        code = []
        T = vU
        for hd in range(2):
            for j in range(0, 16, 2):
                a = A + 16*hd + j; t = T + (j % 8)
                code += ["v_pk_fma_f32 %s, %s, %s, %s" % (vr(a, 2), vr(a, 2), vr(RT+j, 2), SP(sEPS)),
                         "v_pk_mul_f32 %s, %s, %s" % (vr(t, 2), vr(a, 2), SP(sL2E)),
                         "v_max_f32 v%d, s%d, v%d" % (a, sEPS, a), "v_exp_f32_e64 v%d, v%d clamp" % (t, t),
                         "v_max_f32 v%d, s%d, v%d" % (a+1, sEPS, a+1), "v_exp_f32_e64 v%d, v%d clamp" % (t+1, t+1),
                         "v_pk_mul_f32 %s, %s, %s" % (vr(a+32, 2), vr(a+32, 2), vr(RT+j, 2)),
                         "v_pk_add_f32 %s, %s, %s" % (vr(a, 2), vr(a, 2), vr(t, 2)),
                         "v_cvt_pk_bf16_f32 v%d, v%d, v%d" % (T+16+8*hd+j//2, a+32, a+33),
                         ("v_pk_add_f32 %s, %s, %s" % (vr(ZS+2*hd, 2), vr(ZS+2*hd, 2), vr(a, 2))) if j else
                         ("v_pk_mul_f32 %s, %s, %s" % (vr(ZS+2*hd, 2), vr(a, 2), SP(sONE))),
                         "v_cvt_pk_bf16_f32 v%d, v%d, v%d" % (PK+8*hd+j//2, a, a+1)]
        self.straight(code)
        KV = A
        for hd in range(2):
            for st in range(2):
                k("v_mfma_f32_32x32x16_bf16 %s, %s, %s, %s" % (vr(KV+16*hd, 16), vr(PK+8*hd+4*st, 4), vr(T+16+8*hd+4*st, 4), vr(KV+16*hd, 16) if st else "0"))
        k("v_add_f32 v%d, v%d, v%d\nv_add_f32 v%d, v%d, v%d" % (ZS, ZS, ZS+1, ZS+2, ZS+2, ZS+3))
        k("s_lshl_b32 s66, s%d, 9\ns_add_u32 s66, s66, 0x%x\nv_add_u32 v%d, s66, v%d" % (sW, L_ZS, vT+1, vL4))
        k.ds("ds_write_b32 v%d, v%d" % (vT+1, ZS)); k.ds("ds_write_b32 v%d, v%d offset:256" % (vT+1, ZS+2))
        assert phys(self.QS[1]) == phys(self.QS[0]) + SLOT
        sc = phys(self.QS[0])
        k("s_lshl_b32 s66, s%d, 13\ns_add_u32 s66, s66, 0x%x\nv_add_u32 v%d, s66, v%d" % (sW, sc, vT+2, vL16))
        for i in range(8): k.ds("ds_write_b128 v%d, %s offset:%d" % (vT+2, vr(KV+4*i, 4), i*1024))
        k("s_lshl_b32 s66, s%d, 11\ns_add_u32 s66, s66, 0x%x\nv_add_u32 v%d, s66, v%d" % (sW, sc, vT+2, vL16))
        k("v_lshrrev_b32 v%d, 5, v0\nv_lshlrev_b32 v%d, 7, v%d\nv_add_u32 v%d, v%d, v%d\nv_add_u32 v%d, 0x%x, v%d" % (vT+3, vT+3, vT+3, vT+3, vT+3, vL4, vT+3, L_ZS, vT+3))
        k.dsall(); s.barrier()
        for w in range(4):
            for i in range(2): k.ds("ds_read_b128 %s, v%d offset:%d" % (vr(A+8*w+4*i, 4), vT+2, w*8192 + i*1024), "kvr")
        for w in range(4):
            for hh in range(2): k.ds("ds_read_b32 v%d, v%d offset:%d" % (T+2*w+hh, vT+3, w*512 + hh*128), "kvr")
        k.dsall()
        s.readdone |= set(self.QS)
        for i in range(0, 8, 2):
            k("v_pk_add_f32 %s, %s, %s\nv_pk_add_f32 %s, %s, %s" % (vr(A+i, 2), vr(A+i, 2), vr(A+8+i, 2), vr(A+16+i, 2), vr(A+16+i, 2), vr(A+24+i, 2)))
            k("v_pk_add_f32 %s, %s, %s" % (vr(A+i, 2), vr(A+i, 2), vr(A+16+i, 2)))
        k("s_add_u32 s%d, s%d, 0x%x" % (sT3, sKVST, KVP))
        for i in range(2): k.vm("buffer_store_dwordx4 %s, v%d, %s, s%d offen offset:%d sc1" % (vr(A+4*i, 4), vL16, SR(S_WS), sT3, i*1024), "st")
        for c in self.sum_regs(T, 8): k(c)
        k("s_add_u32 s%d, s%d, 0x%x" % (sT3, sZPST, ZP))
        k.vm("buffer_store_dword v%d, v%d, %s, s%d offen sc1" % (T, vL4, SR(S_WS), sT3), "st")
        self.ts()
        SUM = RT
        def kv_loads(batch):
            for m in range(8*batch, 8*batch + 8):
                for i in range(2):
                    def emit(m=m, i=i):
                        if m % 2 == 0 and i == 0: k("s_add_u32 s%d, s%d, 0x%x" % (sT3, sKVLD, KVP + m*2048))
                        k.vm("buffer_load_dwordx4 %s, v%d, %s, s%d offen offset:%d sc1" % (vr(A + 8*(m % 8) + 4*i, 4), vL16, SR(S_WS), sT3, (m % 2)*2048 + i*1024), ("kv", m))
                    s.add(self.G1B - 100 + m + 0.1*i, ("kv", m), emit, gate=("kvb", m))
        def z_loads():
            for m in range(16):
                def emit(m=m):
                    if m == 0: k("s_add_u32 s%d, s%d, 0x%x" % (sT3, sZPLD, ZP))
                    k.vm("buffer_load_dword v%d, v%d, %s, s%d offen offset:%d sc1" % (T+m, vL4, SR(S_WS), sT3, m*256), "zp")
                s.add(self.G1B - 50 + 0.1*m, "zp", emit, gate=("kvb", 15))
        kv_loads(0); kv_loads(1); z_loads()
        def kv_add(m):
            c = [lambda m=m: s.need(("kv", m))]
            for i in range(8):
                r = A + 8*(m % 8) + i
                c.append("v_mov_b32 v%d, v%d" % (SUM+i, r) if m == 0 else "v_add_f32 v%d, v%d, v%d" % (SUM+i, SUM+i, r))
            if m < 8: c.append(lambda m=m: s.gates.add(("kvb", m+8)))
            return c
        def s1_wait():
            self.wait(sFCW, 0, 16)
            for m in range(8): s.gates.add(("kvb", m))
        e_sig, e_wait = self.cfg.get("s1", (32, 72))
        ev = {e_sig: [lambda: k.vmwait("st"), lambda: self.signal(sFCW, 0)], e_wait: [s1_wait]}
        for m in range(4): ev[e_wait + 24 + 6*m] = kv_add(m)
        self.stream(self.items2(self.QB1, B), vm_every=2, events=ev, rate=2)
        s.barrier()
        self.ts()
        self.correct([(4+b, B+16*b) for b in range(2)], "F")
        for m in range(4, 8): self.straight(kv_add(m), every=4)
        code = []
        TT = vFQ
        for j in range(0, 32, 2):
            a = B + j; t = TT + (j % 8)
            code += ["v_pk_fma_f32 %s, %s, %s, %s op_sel_hi:[1,0,1]" % (vr(a, 2), vr(a, 2), vr(vR-1, 2) if False else "v[%d:%d]" % (vT+8, vT+9), SP(sEPS)),
                     "v_pk_mul_f32 %s, %s, %s" % (vr(t, 2), vr(a, 2), SP(sL2E)),
                     "v_max_f32 v%d, s%d, v%d" % (a, sEPS, a), "v_exp_f32_e64 v%d, v%d clamp" % (t, t),
                     "v_max_f32 v%d, s%d, v%d" % (a+1, sEPS, a+1), "v_exp_f32_e64 v%d, v%d clamp" % (t+1, t+1),
                     "s_nop 0",
                     "v_pk_add_f32 %s, %s, %s" % (vr(a, 2), vr(a, 2), vr(t, 2)),
                     "v_cvt_pk_bf16_f32 v%d, v%d, v%d" % (PK+j//2, a, a+1)]
        k("v_mov_b32 v%d, v%d" % (vT+8, vR))
        self.straight(code, every=8)
        for m in range(8, 16): self.straight(kv_add(m), every=4)
        for i in range(4): k("v_cvt_pk_bf16_f32 v%d, v%d, v%d" % (SUM+i, SUM+2*i, SUM+2*i+1))
        k("s_lshl_b32 s66, s%d, 10\ns_add_u32 s66, s66, 0x%x\nv_add_u32 v%d, s66, v%d" % (sW, L_KVF, vT+1, vL16))
        k.ds("ds_write_b128 v%d, %s" % (vT+1, vr(SUM, 4)))
        s.need("zp")
        for c in self.sum_regs(T, 16): k(c)
        k("v_and_b32 v%d, 0x33, v0\nv_bfe_u32 v%d, v0, 2, 1\nv_lshl_or_b32 v%d, v%d, 3, v%d" % (vT+1, vT+2, vT+1, vT+2, vT+1))
        k("v_bfe_u32 v%d, v0, 3, 1\nv_lshl_or_b32 v%d, v%d, 2, v%d\nv_lshlrev_b32 v%d, 1, v%d" % (vT+2, vT+1, vT+2, vT+1, vT+1, vT+1))
        k("s_lshl_b32 s66, s%d, 7\ns_add_u32 s66, s66, 0x%x\nv_add_u32 v%d, s66, v%d" % (sW, L_ZF, vT+1, vT+1))
        k("v_cvt_pk_bf16_f32 v%d, v%d, v%d" % (T, T, T))
        k.ds("ds_write_b16 v%d, v%d" % (vT+1, T))
        k("v_lshrrev_b32 v%d, 5, v0\nv_lshl_add_u32 v%d, v%d, 4, s66\nv_add_u32 v%d, 0x%x, v%d" % (vT+2, vT+2, vT+2, vT+3, L_KVF, vL16))
        k.dsall(); s.barrier()
        KF, ZF = vFQ, vFQ + 16
        for i in range(4):
            k.ds("ds_read_b128 %s, v%d offset:%d" % (vr(ZF+4*i, 4), vT+2, i*32))
            k.ds("ds_read_b128 %s, v%d offset:%d" % (vr(KF+4*i, 4), vT+3, i*1024))
        self.resid_init(XA, self.G3 - 200)
        k.dsall()
        for hd in range(2):
            for base, acc in ((ZF, A+32+16*hd), (KF, A+16*hd)):
                for st in range(2):
                    k("v_mfma_f32_32x32x16_bf16 %s, %s, %s, %s" % (vr(acc, 16), vr(base+8*hd+4*st, 4), vr(PK+8*hd+4*st, 4), vr(acc, 16) if st else "0"))
        k("s_add_u32 s%d, s%d, 0x%x" % (sT3, sTILE, OO))
        for hd in range(2):
            d = A + 32 + 16*hd
            k("v_add_f32 v%d, s%d, v%d\nv_rcp_f32 v%d, v%d" % (d, sEPS, d, d, d))
            for j in range(0, 16, 2):
                a = A + 16*hd + j
                k("v_pk_mul_f32 %s, %s, %s op_sel_hi:[1,0]" % (vr(a, 2), vr(a, 2), vr(d, 2)))
            for j in range(0, 16, 2):
                k("v_cvt_pk_bf16_f32 v%d, v%d, v%d" % (B+8*hd+j//2, A+16*hd+j, A+16*hd+j+1))
            for st in range(2):
                k.vm("buffer_store_dwordx4 %s, v%d, %s, s%d offen offset:%d sc1" % (vr(B+8*hd+4*st, 4), vL16, SR(S_WS), sT3, (2*hd+st)*1024), "st")
        self.ts()
        s.force("res")
        k.vmwait("st"); self.signal(sFROW, 0)
        self.stop("g1")
        self.straight(self.resid_unpack(vACC), every=8)
        s.pump(12)
        self.wait(sFROW, 0, 16)
        self.ts()

    def g3(self):
        k = self.k; s = self.s
        self.tok_loads(OO, 64, lambda f: self.G3 + 2*f - 60, "t3", lambda f: None)
        s.pump(10)
        self.stream(self.items2(list(range(self.Q3, self.Q3+8)), vACC, "t3", zero=False), vm_every=2)
        s.barrier()
        self.ts()
        self.x_epilogue(vACC, XB, STB, False)
        self.ts()
        s.pump(8)
        k.vmwait("st"); self.signal(sFROW, 1)
        self.stop("g3")

    def gelu_consts(self):
        return ["v_mul_f32 v%d, 0x%x, v%d" % (vK1, f2u(-C1), vR), "v_mul_f32 v%d, v%d, v%d" % (vK2, vR, vR),
                "v_mul_f32 v%d, v%d, v%d" % (vK2, vK2, vR), "v_mul_f32 v%d, 0x%x, v%d" % (vK2, f2u(-C2), vK2),
                "v_mul_f32 v%d, v%d, v%d" % (vBR, vB, vR)]

    def g4(self):
        k = self.k; s = self.s
        A = vACC; B = vACC + 64
        s.pump(12)
        self.wait(sFROW, 1, 16)
        self.ts()
        self.tok_loads(XB, 64, lambda f: self.G4A + 4*f - 40, "t4", lambda f: None)
        self.stats_loads(STB, 16, vU, self.G4A + 200, "sb")
        s.pump(8)
        ev = {228: [lambda: s.need("sb")] + self.ln_stats(vU) + self.gelu_consts()}
        self.stream(self.items4(self.QA4, A, "F", "t4"), vm_every=2, events=ev, rate=2)
        s.barrier()
        self.ts()
        self.correct([(6+b, A+16*b) for b in range(4)], "F")
        S, Q = vT+2, vT+4
        KK = "v[%d:%d]" % (vK1, vK2)
        code = []
        for j in range(0, 64, 2):
            a = A + j; t = vU + (j % 16)
            code += [["v_pk_mul_f32 %s, %s, %s" % (vr(t, 2), vr(a, 2), vr(a, 2)),
                      "v_pk_fma_f32 %s, %s, %s, %s op_sel:[0,1,0] op_sel_hi:[1,1,0]" % (vr(t, 2), vr(t, 2), KK, KK),
                      "v_pk_mul_f32 %s, %s, %s" % (vr(t, 2), vr(t, 2), vr(a, 2)),
                      "v_exp_f32 v%d, v%d" % (t, t), "v_exp_f32 v%d, v%d" % (t+1, t+1)],
                     ["v_pk_add_f32 %s, %s, %s" % (vr(t, 2), vr(t, 2), SP(sONE)),
                      "v_rcp_f32 v%d, v%d" % (t, t), "v_rcp_f32 v%d, v%d" % (t+1, t+1)],
                     ["v_pk_mul_f32 %s, %s, %s" % (vr(a, 2), vr(a, 2), vr(t, 2)),
                      ("v_pk_add_f32 %s, %s, %s" % (vr(S, 2), vr(S, 2), vr(a, 2))) if j else ("v_pk_mul_f32 %s, %s, %s" % (vr(S, 2), vr(a, 2), SP(sONE))),
                      ("v_pk_fma_f32 %s, %s, %s, %s" % (vr(Q, 2), vr(a, 2), vr(a, 2), vr(Q, 2))) if j else ("v_pk_mul_f32 %s, %s, %s" % (vr(Q, 2), vr(a, 2), vr(a, 2)))]]
        lin = []
        n = 32
        for i in range(n + 2):
            if i < n: lin += code[3*i]
            if 0 <= i-1 < n: lin += code[3*(i-1)+1]
            if 0 <= i-2 < n: lin += code[3*(i-2)+2]
        self.straight(lin, every=24)
        k("v_add_f32 v%d, v%d, v%d\nv_add_f32 v%d, v%d, v%d" % (S, S, S+1, Q, Q, Q+1))
        k("v_permlane32_swap_b32 v%d, v%d\nv_add_f32 v%d, v%d, v%d" % (S, Q, S, S, Q))
        k("s_add_u32 s%d, s%d, 0x%x" % (sT3, sST2N, ST2))
        k.vm("buffer_store_dword v%d, v%d, %s, s%d offen sc1" % (S, vL4, SR(S_WS), sT3), "st")
        self.ts()
        self.stats_loads(ST2, 14, vU, self.G4B - 100, "s2", gate="S4")
        X, Y = vU, vU+1
        MU, RS = vT+2, vT+3
        norm = [lambda: s.need("s2")] + self.sum_regs(vU, 14)
        norm += ["v_mov_b32 v%d, v%d" % (Y, X), "v_mul_f32 v%d, v%d, v%d" % (RS, vR, vR), "v_permlane32_swap_b32 v%d, v%d" % (X, Y),
                 "v_rcp_f32 v%d, v%d" % (RS, RS),
                 "v_mul_f32 v%d, 0x%x, v%d" % (X, f2u(-1.0/1792), X), "v_mul_f32 v%d, 0x%x, v%d" % (Y, f2u(1.0/1792), Y),
                 "v_fma_f32 v%d, -v%d, v%d, v%d" % (Y, X, X, Y), "v_max_f32 v%d, 0, v%d" % (Y, Y),
                 "v_mul_f32 v%d, 0x%x, v%d" % (RS, f2u(1e-5), RS), "v_add_f32 v%d, v%d, v%d" % (Y, Y, RS),
                 "v_rsq_f32 v%d, v%d" % (RS, Y),
                 "v_lshrrev_b32 v%d, 5, v0" % (vT+4), "v_lshlrev_b32 v%d, 6, v%d" % (vT+4, vT+4),
                 "v_xor_b32 v%d, v%d, v%d" % (vT+4, vT+4, vL16), "v_xor_b32 v%d, 0x80, v%d" % (vT+5, vT+4),
                 "v_mul_f32 v%d, v%d, v%d" % (MU, X, RS)]
        for kb_ in range(8):
            for j in range(0, 8, 2):
                a = A + 8*kb_ + j
                norm += ["v_fma_f32 v%d, v%d, v%d, v%d" % (a, a, RS, MU), "v_fma_f32 v%d, v%d, v%d, v%d" % (a+1, a+1, RS, MU),
                         "v_cvt_pk_bf16_f32 v%d, v%d, v%d" % (vU+16+4*(kb_ % 4)+j//2, a, a+1)]
            def st(kb_=kb_):
                if kb_ % 4 == 0: k("s_add_u32 s%d, s%d, 0x%x" % (sT3, sZ2ST, Z2 + kb_*1024))
                k.vm("buffer_store_dwordx4 %s, v%d, %s, s%d offen offset:%d sc1" % (vr(vU+16+4*(kb_ % 4), 4), vT+4+(kb_ % 2), SR(S_WS), sT3, (kb_ % 4)*1024), "st2")
                return 1
            norm.append(st)
        def s4_wait():
            self.wait(sFROW, 2, 14); s.gates.add("S4"); s.force("s2")
        def s5_wait():
            self.wait(sFC, 0, 64); s.gates.add("S5")
        e1, e2, e3, e4, e5 = self.cfg.get("s45", (28, 76, 96, 190, 236))
        ev = {e1: [lambda: k.vmwait("st"), lambda: self.signal(sFROW, 2)], e2: [s4_wait], e3: norm,
              e4: [lambda: k.vmwait("st2"), lambda: self.signal(sFC, 0)], e5: [s5_wait]}
        self.stream(self.items4(self.QB4, B, "F"), vm_every=3, events=ev, rate=2)
        s.barrier()
        self.correct([(10+b, B+16*b) for b in range(4)], "F")
        self.ts()
        self.stop("g4")

    def g5(self):
        k = self.k; s = self.s
        A = vACC; B = vACC + 64
        def wsp_read(j, u):
            def f():
                q = self.Q5 + 2*j
                if u == 0: s.need(("slot", q))
                a = phys(q)
                k.ds("ds_read_b128 %s, v%d offset:%d" % (vr(16*(j % 16) + 4*u, 4, "a"), vAS + 4*(a >> 16) + u, a & 0xffff), ("ws", j, u))
                self.issued.add(("ws", j, u))
                return 1
            return f
        its = []
        for j in range(32):
            for u in range(4):
                for b in range(4):
                    its.append(dict(q=self.Q5+2*j+1, pat="z", off=(u//2)*8192 + b*2048 + (u % 2)*256, acc=A+16*b, t=16*(j % 16)+4*u, ori="F",
                                    zero=(j == 0 and u == 0), tokds=("ws", j, u) if b == 0 else None))
        for u in range(4): wsp_read(0, u)()
        gl = []
        for j in range(64):
            a = B + j; t = vU + (j % 8)
            gl.append(["v_mul_f32 v%d, v%d, v%d" % (t, a, a), "v_fma_f32 v%d, v%d, v%d, v%d" % (t, t, vK2, vK1),
                       "v_mul_f32 v%d, v%d, v%d" % (t, t, a), "v_exp_f32 v%d, v%d" % (t, t)])
            gl.append(["v_add_f32 v%d, 1.0, v%d" % (t, t), "v_rcp_f32 v%d, v%d" % (t, t)])
            gl.append(["v_mul_f32 v%d, v%d, v%d" % (a, a, t)])
        ev = {}
        for j in range(32):
            e = []
            if j + 1 < 32:
                for u in range(4): ev.setdefault(16*j + 2 + 2*u, []).append(wsp_read(j+1, u))
            def rel(j=j):
                s.released.add(self.Q5 + 2*j); return 0
            ev.setdefault(16*j + 13, []).append(rel)
            for i in (2*j, 2*j+1):
                e += gl[3*i]
                if i >= 1: e += gl[3*(i-1)+1]
                if i >= 2: e += gl[3*(i-2)+2]
            if j == 31: e += gl[3*63+1] + gl[3*62+2] + gl[3*63+2]
            ev.setdefault(16*j, []).extend(e[:0])
            for x, ins in enumerate(e): ev.setdefault(16*j + (x*16)//len(e), []).append(ins)
        self.resid_init(XB, self.G6 - 200) if False else None
        self.stream(its, vm_every=2, events=ev, rate=2)
        s.barrier()
        self.ts()
        RB = "v[%d:%d]" % (vT+8, vT+9)
        k("v_mov_b32 v%d, v%d\nv_mov_b32 v%d, v%d" % (vT+8, vR, vT+9, vBR))
        for kb_ in range(8):
            for j in range(0, 8, 2):
                a = A + 8*kb_ + j; z = B + 8*kb_ + j
                k("v_pk_fma_f32 %s, %s, %s, %s op_sel:[0,0,1] op_sel_hi:[1,0,1]" % (vr(a, 2), vr(a, 2), RB, RB))
                k("v_pk_mul_f32 %s, %s, %s" % (vr(a, 2), vr(a, 2), vr(z, 2)))
            for j in range(0, 8, 2):
                a = A + 8*kb_ + j
                k("v_cvt_pk_bf16_f32 v%d, v%d, v%d" % (vU+4*kb_+j//2, a, a+1))
            if kb_ % 4 == 0: k("s_add_u32 s%d, s%d, 0x%x" % (sT3, sHST, HH + (kb_//4)*CH))
            k.vm("buffer_store_dwordx4 %s, v%d, %s, s%d offen offset:%d sc1" % (vr(vU+4*kb_, 4), vL16, SR(S_WS), sT3, (kb_ % 4)*1024), "st")
        self.ts()
        s.pump(8)
        k.vmwait("st"); self.signal(sFROW, 3)
        self.stop("g5")
        s.pump(100, maxdl=self.G6 + 16*NSLOT)
        self.join_pending = [o["tag"] for o in s.q]

    def idle_path(self, join):
        k = self.k
        k("s_waitcnt vmcnt(0)\ns_barrier")
        for j in range(14):
            if ("slot", self.Q6 + j) in self.join_pending: continue
            k("s_add_u32 m0, s%d, 0x%x\ns_add_u32 s%d, s%d, 0x%x" % (sM0, phys(self.Q6 + j), sDMA, sOB, j*128*2048))
            for d in range(4):
                k("buffer_load_dwordx4 v%d, %s, s%d offen offset:%d lds" % (vDO+d, SR(S_WOUT), sDMA, d*1024))
        k("s_waitcnt vmcnt(0)")
        if self.cfg.get("ts"): k("s_add_u32 s82, s82, %d" % (4*self.ts_skip))
        if self.cfg.get("stop") in ("g4", "g5"): k("s_cmp_eq_u32 s%d, %d\ns_cbranch_scc1 %s_exit" % (sLAY, self.cfg.get("stop_layer", 0), self.name))
        k("s_branch %s" % join)

    def g6(self):
        k = self.k; s = self.s
        self.resid_init(XB, -1000)
        s.force("res")
        self.straight(self.resid_unpack(vACC), every=1000)
        self.wait(sFROW, 3, 14)
        self.ts()
        k("s_cmp_eq_u32 s%d, 1\ns_cselect_b32 s%d, 0, s%d" % (sLAY, S_QKV+2, S_QKV+2))
        self.add_g1a_slots(self.QN, self.GN)
        s.q = [o for o in s.q if not (o["slot"] is not None and o["slot"] >= self.QN + NSLOT)]
        self.tok_loads(HH, 112, lambda f: self.G6 + 2*f - 60, "t6", lambda f: None if f < 64 else ("t6u", f-64))
        s.pump(10)
        self.stream(self.items2(list(range(self.Q6, self.Q6+14)), vACC, "t6", zero=False, gatep="t6u"), vm_every=2)
        s.barrier()
        self.ts()
        self.x_epilogue(vACC, LS + XA, LS + STA, True)
        self.ts()
        s.pump(8)
        k.vmwait("st"); self.signal(sFROW, 4)
        self.stop("g6")
        s.pump(100)
        assert not s.q, s.q
        self.wait(sFROW, 4, 16)

    def build(self):
        k = self.k; s = self.s; name = self.name
        self.prologue()
        self.add_g1a_slots(self.QA1, self.G1A)
        s.pump(4*NSLOT)
        self.prologue2()
        k.safe()
        k("%s_top:" % name)
        k.vmall()
        self.ts()
        self.queue_weights()
        self.g1()
        self.g3()
        idle = name + "_idle"; join = name + "_join"
        k("s_and_b32 s66, s%d, 7\ns_cmp_eq_u32 s66, 7\ns_cbranch_scc1 %s" % (sN, idle))
        n0 = self.nts
        self.g4()
        self.g5()
        self.ts_skip = self.nts - n0
        k.safe()
        k("%s:" % join)
        self.g6()
        for r in (sTB4K, sTILE, sZ2ST, sZ2LD, sKVST, sKVLD, sZPST, sZPLD, sHST, sSTN, sST2N):
            k("s_add_u32 s%d, s%d, 0x%x" % (r, r, LS))
        for p in (sFROW, sFCW, sFC): k("s_add_u32 s%d, s%d, 2048\ns_addc_u32 s%d, s%d, 0" % (p, p, p+1, p+1))
        k("s_add_u32 s%d, s%d, 1" % (sLAY, sLAY))
        k.safe()
        k("s_branch %s_top" % name)
        k("%s:" % idle)
        self.idle_path(join)
        k("%s:" % self.final_label)
        k("v_and_b32 v%d, 31, v0\nv_lshlrev_b32 v%d, 11, v%d\nv_lshrrev_b32 v%d, 5, v0\nv_lshl_add_u32 v%d, v%d, 4, v%d" % (vT, vT, vT, vT+1, vT, vT+1, vT))
        for i in range(4):
            k("buffer_store_dwordx4 %s, v%d, %s, s%d offen offset:%d" % (vr(vU+4*i, 4), vT, SR(S_OUT), sOUT, i*32))
        if self.cfg.get("ts"):
            k("s_waitcnt vmcnt(0)"); self.ts()
        k("%s_exit:\ns_waitcnt vmcnt(0)\n%s_end:\ns_endpgm" % (name, name))
        return header(name) + k.text() + desc(name, vgpr=256, agpr=256)

def generate(cfg):
    p0 = gen_p0("pre_kernel", cfg)
    m = Main("main_kernel", cfg)
    body = m.build()
    head = ("; fused 2 x (linear attention block + gMLP block), generated by a script\n"
            "; @launch kernel=pre_kernel grid=(256,1,1) block=(256,1,1) lds=8192\n"
            "; @launch kernel=main_kernel grid=(256,1,1) block=(256,1,1) lds=%d\n" % LDSB)
    return head + '.amdgcn_target "amdgcn-amd-amdhsa--gfx950"\n' + p0 + body, m

if __name__ == "__main__":
    cfg = eval(sys.argv[2]) if len(sys.argv) > 2 else {}
    t, m = generate(cfg)
    open(sys.argv[1], "w").write(t)
    print("bytes", len(t), "lines", t.count("\n"), "nops", m.k.nnop, "ts", m.nts)
```
